```python
import torch

def _softmax(x, axis=-1):
    return torch.softmax(x, dim=axis)
def _gelu(x):
    return torch.nn.functional.gelu(x, approximate="tanh")
def _silu(x):
    return torch.nn.functional.silu(x)
def _sigmoid(x):
    return torch.sigmoid(x)
def _layernorm(x, axis=-1, eps=1e-5):
    m = x.mean(dim=axis, keepdim=True)
    v = x.var(dim=axis, keepdim=True, unbiased=False)
    return (x - m) / torch.sqrt(v + eps)
def _scatter_add(tgt, idx, src, axis=0):
    return tgt.clone().index_add_(axis, idx, src)
def _segment_sum(src, seg, n):
    out = torch.zeros((n,) + src.shape[1:], dtype=src.dtype)
    return out.index_add_(0, seg, src)
def _pad(x, pw):
    flat = tuple(v for pair in reversed(pw) for v in pair)
    return torch.nn.functional.pad(x, flat)

kernel_name = 'interleave_layers__gqa_block_cached__glu_gated_reglu__decode'

def setup_inputs():

    _w = (lambda a: (lambda t: t.to(torch.bfloat16) if t.is_floating_point() else t)(torch.as_tensor(a)))
    def _A_setup():
        B, Sq, D = 4, 1, 512
        Hq, Hkv, Sk, Dh = 32, 8, 8192, 128
        assert Hq % Hkv == 0, (Hq, Hkv)
        return {
            "x": _w((lambda *s: torch.randn(*s, dtype=torch.bfloat16) * 0.05)(B, Sq, D)),
            "k_cache": _w((lambda *s: torch.randn(*s, dtype=torch.bfloat16) * 1.6)(B, Hkv, Sk, Dh)),
            "v_cache": _w((lambda *s: torch.randn(*s, dtype=torch.bfloat16) * 0.8)(B, Hkv, Sk, Dh)),
            "wq": _w((lambda *s: torch.randn(*s, dtype=torch.bfloat16) * 1.6)(D, Hq * Dh) * (D ** -0.5)),
            "wo": _w((lambda *s: torch.randn(*s, dtype=torch.bfloat16) * 0.8)(Hq * Dh, D) * ((Hq * Dh) ** -0.5)),
        }
    _A_in = _A_setup()

    def _B_setup():
        B, S, D, F = 4, 1, 512, 1792
        return {
            "x": _w((lambda *s: torch.randn(*s, dtype=torch.bfloat16) * 0.05)(B, S, D)),
            "W_gate": _w((lambda *s: torch.randn(*s, dtype=torch.bfloat16) * 0.4)(D, F) * (2.0 / D) ** 0.5),
            "W_up": _w((lambda *s: torch.randn(*s, dtype=torch.bfloat16) * 0.4)(D, F) * (2.0 / D) ** 0.5),
            "W_down": _w((lambda *s: torch.randn(*s, dtype=torch.bfloat16) * 0.4)(F, D) * (1.0 / F) ** 0.5),
        }
    _B_in = _B_setup()

    return {
        "A_x": _A_in["x"],
        "A_k_cache": _A_in["k_cache"],
        "A_v_cache": _A_in["v_cache"],
        "A_wq": _A_in["wq"],
        "A_wo": _A_in["wo"],
        "B_x": _B_in["x"],
        "B_W_gate": _B_in["W_gate"],
        "B_W_up": _B_in["W_up"],
        "B_W_down": _B_in["W_down"],
    }

def reference(A_x, A_k_cache, A_v_cache, A_wq, A_wo, B_x, B_W_gate, B_W_up, B_W_down):
    def _A_ref(x, k_cache, v_cache, wq, wo):
        B, Sq, D = x.shape
        Hq, Dh = 32, 128
        Hkv = k_cache.shape[1]
        rep = Hq // Hkv
        q = (lambda x, *d: x.permute(*d))((x @ wq).reshape(B, Sq, Hq, Dh), 0, 2, 1, 3)
        k = (lambda x, n, axis: torch.repeat_interleave(x, n, dim=axis))(k_cache, rep, axis=1)
        v = (lambda x, n, axis: torch.repeat_interleave(x, n, dim=axis))(v_cache, rep, axis=1)
        scores = torch.einsum("bhqd,bhkd->bhqk", q, k) * (Dh ** -0.5)
        p = _softmax(scores, axis=-1)
        o = torch.einsum("bhqk,bhkd->bhqd", p, v)
        return (lambda x, *d: x.permute(*d))(o, 0, 2, 1, 3).reshape(B, Sq, Hq * Dh) @ wo

    def _B_ref(x, W_gate, W_up, W_down):
        gate = torch.einsum("bsd,df->bsf", x, W_gate)
        up = torch.einsum("bsd,df->bsf", x, W_up)
        gate = gate * (lambda x, dt: x.to(dt))(gate > 0, gate.dtype)
        h = gate * up
        return torch.einsum("bsf,fd->bsd", h, W_down)

    x = A_x
    x = x + _A_ref(_layernorm(x, axis=-1), A_k_cache, A_v_cache, A_wq, A_wo)
    x = x + _B_ref(_layernorm(x, axis=-1), B_W_gate, B_W_up, B_W_down)
    x = x + _A_ref(_layernorm(x, axis=-1), A_k_cache, A_v_cache, A_wq, A_wo)
    x = x + _B_ref(_layernorm(x, axis=-1), B_W_gate, B_W_up, B_W_down)
    return x
```

```python
import sys, math

KNAME = "interleave_layers__gqa_block_cached__glu_gated_reglu__decode_kernel"

DEFAULT = dict(
    pol="nt",
    layout="w2 c3 T4",
    wgmap="C",
    stamps=False,
    delayB=10, delayD=10,
    spin=1 << 17,
    force_global=False,
    NT=2,
)

GS = 256 * 1024
LS = 112 * 1024
PA_O = 0
PB_O = 64 * 1024
PD_O = 72 * 1024
O_O = 80 * 1024
X1_O = 84 * 1024
X2_O = 88 * 1024
QN_O = 92 * 1024
ST_O = 96 * 1024
H_O = 98 * 1024
LA_O = 100 * 1024
Q1_O = 224 * 1024
CLR_PER_WG = 7 * 1024
WS_BYTES = 8 * GS
STAMP_OFF = 128 << 20

OS_B = 131072
OS_W = 2112
OS_H = 528
WSX_B = OS_B + 4 * OS_W
STASH_B = WSX_B + 128
NSTASH = 7
NRES = 16 - NSTASH

sW, sX, sR, sB, sC = 3, 4, 5, 6, 7
SK, SV, SWS, SX0, SDBG, SOUT = 8, 12, 16, 20, 24, 28
sKV, sT, sLDS, sGB, sLOC = 32, 33, 34, 35, 36
sLAYER = 37
sM16 = 38
sM8 = 40
sLB = 42
sSPIN = 43
sONES = 44
sCSC = 45
sT2, sT3 = 46, 47
sSO = 48
sTP = 56
sTQ = 58
sSTEP, sCNT = 60, 61
sFAIL = 62
sP = 64
pX, pK, pV, pWQ, pWO, pBX, pWG, pWU, pWD, pOUT, pDBG, pWS = [64 + 2 * i for i in range(12)]
STAMP_S = [88, 90, 92, 94, 96, 98, 100, 64, 66, 68, 70, 72, 74, 76, 78, 80]

vLANE = 0
vKOFF = 1
vVOFF = 2
vTRE = 3
vCS = 4
vQOFF = 8
vTRO = 9
vA, vB_, vC_, vD_, vE_, vF_ = 10, 11, 12, 13, 14, 15
W0 = 16
S_ = 48
E_ = 64
SLAB = 92
VR = 128

MF = "v_mfma_f32_16x16x32_bf16"

def q(r, n=4, p="v"):
    return f"{p}[{r}:{r+n-1}]"

def slabq(s):
    return SLAB + 4 * s if s < NRES else E_ + 4 * (s - NRES)

def parse_layout(spec):
    pos = 0; out = {"T": [], "w": [], "c": []}
    for f in spec.split():
        for i in range(int(f[1:])):
            out[f[0]].append(pos); pos += 1
    assert pos == 9
    return out


class G:
    def __init__(self, cfg):
        self.cfg = cfg
        self.L = []
        self.vm = []
        self.nlab = 0
        self.nstamp = 0
        self.stamp_names = {}

    def e(self, s):
        self.L.append("    " + s)

    def lab(self, name):
        self.L.append(name + ":")

    def new(self, p="L"):
        self.nlab += 1
        return f"{p}_{self.nlab}"

    def c(self, s):
        self.L.append("    ; " + s)

    def vmop(self, s, tag=None):
        self.e(s)
        self.vm.append(tag)

    def younger(self, tag):
        idx = max(i for i, t in enumerate(self.vm) if t == tag)
        return len(self.vm) - 1 - idx

    def waitvm(self, *tags):
        n = min(self.younger(t) for t in tags)
        self.e(f"s_waitcnt vmcnt({min(n, 63)})")

    def stamp(self, idx, name):
        if not self.cfg["stamps"]:
            return
        r = STAMP_S[idx]
        self.stamp_names.setdefault(idx, []).append(name)
        if 3 <= idx <= 8:
            r2 = STAMP_S[idx + 6]
            a = self.new("Lst"); b = self.new("Lst")
            self.e(f"s_cmp_lg_u32 s{sLAYER}, 0"); self.e(f"s_cbranch_scc1 {a}")
            self.e(f"s_memrealtime s[{r}:{r+1}]"); self.e(f"s_branch {b}")
            self.lab(a); self.e(f"s_memrealtime s[{r2}:{r2+1}]"); self.lab(b)
        else:
            self.e(f"s_memrealtime s[{r}:{r+1}]")

    def lstore(self, ins):
        a = self.new("Ls"); b = self.new("Ls")
        self.e(f"s_cmp_eq_u32 s{sLOC}, 0")
        self.e(f"s_cbranch_scc1 {a}")
        self.e(ins)
        self.e(f"s_branch {b}")
        self.lab(a)
        self.e(ins + " sc1")
        self.lab(b)

    def spin_check(self, retry, done):
        self.e(f"s_sub_u32 s{sSPIN}, s{sSPIN}, 1")
        self.e(f"s_cbranch_scc1 {done}")
        self.e(f"s_branch {retry}")


def gen(**kw):
    cfg = dict(DEFAULT); cfg.update(kw)
    g = G(cfg)
    e, lab, c = g.e, g.lab, g.c
    pol = cfg["pol"]
    lay = parse_layout(cfg["layout"])
    slow = []

    def toff(T):
        o = 0
        for i, p in enumerate(lay["T"]):
            if T >> i & 1: o |= 1 << (12 + p)
        return o

    hdr = []
    hdr.append("; @launch grid=(256,1,1) block=(256,1,1) lds=163840")
    hdr.append('.amdgcn_target "amdgcn-amd-amdhsa--gfx950"')
    hdr.append(".text"); hdr.append(f".globl {KNAME}"); hdr.append(".p2align 8")
    hdr.append(f".type {KNAME},@function"); hdr.append(f"{KNAME}:")

    e("s_cmp_ge_u32 s2, 256")
    e("s_cbranch_scc1 L_END")
    g.stamp(0, "start")
    e("s_load_dwordx16 s[64:79], s[0:1], 0")
    e("s_load_dwordx8 s[80:87], s[0:1], 64")
    e("v_lshrrev_b32 v1, 6, v0")
    e("v_and_b32 v0, 63, v0")
    e(f"s_and_b32 s{sX}, s2, 7")
    e(f"v_readfirstlane_b32 s{sW}, v1")
    e(f"s_lshr_b32 s{sR}, s2, 3")
    if cfg["wgmap"] == "C":
        e(f"s_and_b32 s{sC}, s{sR}, 7"); e(f"s_lshr_b32 s{sB}, s{sR}, 3")
    else:
        e(f"s_and_b32 s{sB}, s{sR}, 3"); e(f"s_lshr_b32 s{sC}, s{sR}, 2")
    e(f"v_and_b32 v{vA}, 15, v0")
    e(f"v_lshrrev_b32 v{vB_}, 4, v0")
    e(f"v_lshlrev_b32 v{vKOFF}, 8, v{vA}")
    e(f"v_lshl_add_u32 v{vKOFF}, v{vB_}, 4, v{vKOFF}")
    e(f"s_lshl_b32 s{sKV}, s{sB}, 3"); e(f"s_add_u32 s{sKV}, s{sKV}, s{sX}"); e(f"s_lshl_b32 s{sKV}, s{sKV}, 21")
    for name, reg in (("c", sC), ("w", sW)):
        for i, p in enumerate(lay[name]):
            e(f"s_bfe_u32 s{sT}, s{reg}, {(1 << 16) | i}"); e(f"s_lshl_b32 s{sT}, s{sT}, {12 + p}"); e(f"s_or_b32 s{sKV}, s{sKV}, s{sT}")
    e(f"s_lshl_b32 s{sLDS}, s{sW}, 15")
    e(f"s_mov_b32 s{SK+2}, 0x4000000"); e(f"s_mov_b32 s{SK+3}, 0x20000")
    e(f"s_mov_b32 s{SV+2}, 0x4000000"); e(f"s_mov_b32 s{SV+3}, 0x20000")
    e("s_waitcnt lgkmcnt(0)")
    e(f"s_mov_b32 s{SK}, s{pK}"); e(f"s_and_b32 s{SK+1}, s{pK+1}, 0xffff")

    def ktile(T):
        e(f"s_add_u32 s{sT}, s{sKV}, {toff(T)}")
        for s in range(4):
            r = (T * 4 + s) * 4
            g.vmop(f"buffer_load_dwordx4 a[{r}:{r+3}], v{vKOFF}, s[{SK}:{SK+3}], s{sT} offen offset:{s*64} {pol}", f"K{T}")

    def vtile(T, slot):
        e(f"s_add_u32 s{sT}, s{sKV}, {toff(T)}")
        for s in range(4):
            e(f"s_add_u32 m0, s{sLDS}, {slot*8192 + (T & 1)*4096 + s*960}")
            e("s_nop 0")
            g.vmop(f"buffer_load_dwordx4 v{vVOFF}, s[{SV}:{SV+3}], s{sT} offen offset:{s*64} {pol} lds", f"V{T}")

    ktile(0)
    e(f"s_mov_b32 s{SV}, s{pV}"); e(f"s_and_b32 s{SV+1}, s{pV+1}, 0xffff")
    e(f"s_mov_b32 s{SWS}, s{pWS}"); e(f"s_and_b32 s{SWS+1}, s{pWS+1}, 0xffff"); e(f"s_mov_b32 s{SWS+2}, {WS_BYTES}"); e(f"s_mov_b32 s{SWS+3}, 0x20000")
    e(f"s_mov_b32 s{SX0}, s{pX}"); e(f"s_and_b32 s{SX0+1}, s{pX+1}, 0xffff"); e(f"s_mov_b32 s{SX0+2}, 4096"); e(f"s_mov_b32 s{SX0+3}, 0x20000")
    e(f"s_mov_b32 s{SDBG}, s{pDBG}"); e(f"s_and_b32 s{SDBG+1}, s{pDBG+1}, 0xffff"); e(f"s_mov_b32 s{SDBG+2}, 256"); e(f"s_mov_b32 s{SDBG+3}, 0x20000")
    e(f"s_mov_b32 s{SOUT}, s{pOUT}"); e(f"s_and_b32 s{SOUT+1}, s{pOUT+1}, 0xffff"); e(f"s_mov_b32 s{SOUT+2}, 4096"); e(f"s_mov_b32 s{SOUT+3}, 0x20000")
    e(f"s_mov_b32 s{sM16}, 0x000f000f"); e(f"s_mov_b32 s{sM16+1}, 0x000f000f")
    e(f"s_mov_b32 s{sM8}, 0x000f000f"); e(f"s_mov_b32 s{sM8+1}, 0")
    e(f"s_mov_b32 s{sLAYER}, 0"); e(f"s_mov_b32 s{sLB}, 0")
    e(f"s_lshl_b32 s{sGB}, s{sX}, 18")
    e(f"s_mov_b32 s{sSPIN}, {cfg['spin']}")
    e(f"s_mov_b32 s{sONES}, 0x3f803f80")
    import struct
    cs = struct.unpack("<I", struct.pack("<f", (128 ** -0.5) * math.log2(math.e)))[0]
    e(f"s_mov_b32 s{sCSC}, {cs:#x}")
    e(f"s_mov_b32 s{sLOC}, 0")

    c("slab source parameters by wave role: sTP base(half0), sTQ base(half1), sSTEP row stride, sCNT k-steps")
    l1, l2, l3, ld = g.new("Lr"), g.new("Lr"), g.new("Lr"), g.new("Lr")
    e(f"s_cmp_eq_u32 s{sW}, 1"); e(f"s_cbranch_scc1 {l1}")
    e(f"s_cmp_eq_u32 s{sW}, 2"); e(f"s_cbranch_scc1 {l2}")
    e(f"s_cmp_eq_u32 s{sW}, 3"); e(f"s_cbranch_scc1 {l3}")
    e(f"s_lshl_b32 s{sT}, s{sX}, 10"); e(f"s_lshl_b32 s{sT2}, s{sR}, 5"); e(f"s_add_u32 s{sT}, s{sT}, s{sT2}")
    e(f"s_add_u32 s{sTP}, s{pWQ}, s{sT}"); e(f"s_addc_u32 s{sTP+1}, s{pWQ+1}, 0")
    e(f"s_add_u32 s{sTQ}, s{sTP}, 16"); e(f"s_addc_u32 s{sTQ+1}, s{sTP+1}, 0")
    e(f"s_mov_b32 s{sSTEP}, 8192"); e(f"s_mov_b32 s{sCNT}, 16"); e(f"s_branch {ld}")
    lab(l1)
    e(f"s_lshl_b32 s{sT}, s{sX}, 19"); e(f"s_lshl_b32 s{sT2}, s{sR}, 5"); e(f"s_add_u32 s{sT}, s{sT}, s{sT2}")
    e(f"s_add_u32 s{sTP}, s{pWO}, s{sT}"); e(f"s_addc_u32 s{sTP+1}, s{pWO+1}, 0")
    e(f"s_add_u32 s{sTQ}, s{sTP}, 16"); e(f"s_addc_u32 s{sTQ+1}, s{sTP+1}, 0")
    e(f"s_mov_b32 s{sSTEP}, 1024"); e(f"s_mov_b32 s{sCNT}, 16"); e(f"s_branch {ld}")
    lab(l2)
    e(f"s_min_u32 s{sT2}, s{sR}, 27"); e(f"s_lshl_b32 s{sT2}, s{sT2}, 4"); e(f"s_mul_i32 s{sT}, s{sX}, 448"); e(f"s_add_u32 s{sT}, s{sT}, s{sT2}")
    e(f"s_add_u32 s{sTP}, s{pWG}, s{sT}"); e(f"s_addc_u32 s{sTP+1}, s{pWG+1}, 0")
    e(f"s_add_u32 s{sTQ}, s{pWU}, s{sT}"); e(f"s_addc_u32 s{sTQ+1}, s{pWU+1}, 0")
    e(f"s_mov_b32 s{sSTEP}, 3584"); e(f"s_mov_b32 s{sCNT}, 16"); e(f"s_branch {ld}")
    lab(l3)
    e(f"s_mul_i32 s{sT}, s{sX}, {224*1024}"); e(f"s_lshl_b32 s{sT2}, s{sR}, 5"); e(f"s_add_u32 s{sT}, s{sT}, s{sT2}")
    e(f"s_add_u32 s{sTP}, s{pWD}, s{sT}"); e(f"s_addc_u32 s{sTP+1}, s{pWD+1}, 0")
    e(f"s_add_u32 s{sTQ}, s{sTP}, 16"); e(f"s_addc_u32 s{sTQ+1}, s{sTP+1}, 0")
    e(f"s_mov_b32 s{sSTEP}, 1024"); e(f"s_mov_b32 s{sCNT}, 7")
    lab(ld)
    e(f"v_bfe_u32 v{vC_}, v0, 3, 2")
    e(f"v_lshlrev_b32 v{vC_}, 3, v{vC_}")
    e(f"v_lshrrev_b32 v{vD_}, 5, v0")
    e(f"v_lshl_add_u32 v{vC_}, v{vD_}, 2, v{vC_}")
    e(f"v_bfe_u32 v{vD_}, v0, 1, 2")
    e(f"v_add_u32 v{vC_}, v{vC_}, v{vD_}")
    e(f"v_mul_lo_u32 v{vC_}, v{vC_}, s{sSTEP}")
    e(f"v_and_b32 v{vD_}, 1, v0")
    e(f"v_cmp_eq_u32 vcc, 1, v{vD_}")
    e(f"v_mov_b32 v{W0+16}, s{sTP}"); e(f"v_mov_b32 v{W0+17}, s{sTP+1}")
    e(f"v_mov_b32 v{W0+18}, s{sTQ}"); e(f"v_mov_b32 v{W0+19}, s{sTQ+1}")
    e(f"v_cndmask_b32 v{W0+16}, v{W0+16}, v{W0+18}, vcc")
    e(f"v_cndmask_b32 v{W0+17}, v{W0+17}, v{W0+19}, vcc")
    e(f"v_add_co_u32 v{W0+16}, vcc, v{W0+16}, v{vC_}")
    e("s_nop 1")
    e(f"v_addc_co_u32 v{W0+17}, vcc, 0, v{W0+17}, vcc")
    e(f"s_mov_b32 m0, s{sLDS}")
    e(f"s_lshl_b32 s{sSTEP}, s{sSTEP}, 5")
    lp = g.new("Lslab")
    lab(lp)
    e(f"global_load_lds_dwordx4 v[{W0+16}:{W0+17}], off")
    e(f"v_add_co_u32 v{W0+16}, vcc, s{sSTEP}, v{W0+16}")
    e("s_add_u32 m0, m0, 1024")
    e(f"s_sub_u32 s{sCNT}, s{sCNT}, 1")
    e(f"v_addc_co_u32 v{W0+17}, vcc, 0, v{W0+17}, vcc")
    e(f"s_cmp_lg_u32 s{sCNT}, 0")
    e(f"s_cbranch_scc1 {lp}")
    def off_bload(dst, rowshift):
        e(f"v_and_b32 v{dst}, 3, v0")
        e(f"v_lshlrev_b32 v{dst}, {rowshift}, v{dst}")
        e(f"v_bfe_u32 v{vF_}, v0, 2, 2")
        e(f"v_lshl_add_u32 v{dst}, v{vF_}, 6, v{dst}")
        e(f"v_lshrrev_b32 v{vF_}, 4, v0")
        e(f"v_lshl_add_u32 v{dst}, v{vF_}, 4, v{dst}")
    def off_ng(dst, nshift, gshift):
        e(f"v_and_b32 v{dst}, 3, v0")
        e(f"v_lshlrev_b32 v{dst}, {nshift}, v{dst}")
        e(f"v_lshrrev_b32 v{vF_}, 4, v0")
        e(f"v_lshl_add_u32 v{dst}, v{vF_}, {gshift}, v{dst}")
    off_bload(vA, 10)
    for t in range(4):
        g.vmop(f"buffer_load_dwordx4 {q(W0+4*t)}, v{vA}, s[{SX0}:{SX0+3}], 0 offen offset:{t*256}", "x0")
    for T in (1, 2, 3): ktile(T)
    e(f"v_lshrrev_b32 v{vB_}, 2, v0")
    e(f"v_lshlrev_b32 v{vVOFF}, 8, v{vB_}")
    e(f"v_and_b32 v{vB_}, 3, v0")
    e(f"v_bfe_u32 v{vC_}, v0, 4, 1")
    e(f"v_lshlrev_b32 v{vC_}, 1, v{vC_}")
    e(f"v_xor_b32 v{vB_}, v{vB_}, v{vC_}")
    e(f"v_lshl_add_u32 v{vVOFF}, v{vB_}, 4, v{vVOFF}")
    e(f"v_lshrrev_b32 v{vB_}, 2, v0")
    e(f"v_lshlrev_b32 v{vTRE}, 6, v{vB_}")
    e(f"v_bfe_u32 v{vC_}, v0, 4, 1")
    e(f"v_lshl_add_u32 v{vTRE}, v{vC_}, 5, v{vTRE}")
    e(f"v_and_b32 v{vC_}, 3, v0")
    e(f"v_lshl_add_u32 v{vTRE}, v{vC_}, 3, v{vTRE}")
    e(f"v_add_u32 v{vTRE}, s{sLDS}, v{vTRE}")
    e(f"v_xor_b32 v{vTRO}, 32, v{vTRE}")
    e(f"v_and_b32 v{vB_}, 15, v0")
    e(f"v_lshlrev_b32 v{vQOFF}, 8, v{vB_}")
    e(f"v_lshrrev_b32 v{vC_}, 4, v0")
    e(f"v_lshl_add_u32 v{vQOFF}, v{vC_}, 4, v{vQOFF}")
    e(f"v_cmp_gt_u32 vcc, 4, v{vB_}")
    e(f"v_bfrev_b32 v{vC_}, 1")
    e("s_nop 0")
    e(f"v_cndmask_b32 v{vQOFF}, v{vC_}, v{vQOFF}, vcc")

    c("slab: transpose out of LDS")
    g.waitvm("x0")
    e(f"v_lshlrev_b32 v{vB_}, 3, v0")
    e(f"v_add_u32 v{vB_}, s{sLDS}, v{vB_}")
    for s in range(16):
        r = slabq(s)
        e(f"ds_read_b64_tr_b16 v[{r}:{r+1}], v{vB_} offset:{s*1024}")
        e(f"ds_read_b64_tr_b16 v[{r+2}:{r+3}], v{vB_} offset:{s*1024+512}")
        if s % 4 == 3: e("s_waitcnt lgkmcnt(0)")
    for i in range(4): e(f"v_mov_b32 v{S_+i}, s{sONES}")
    e("s_nop 1")
    for s in range(16):
        e(f"{MF} {q(vCS)}, {q(slabq(s))}, {q(S_)}, " + ("0" if s == 0 else q(vCS)))
    def stash_addr(dst):
        e(f"s_mul_i32 s{sT}, s{sW}, {NSTASH*1024}")
        e(f"s_add_u32 s{sT}, s{sT}, {STASH_B}")
        e(f"v_lshlrev_b32 v{dst}, 4, v0")
        e(f"v_add_u32 v{dst}, s{sT}, v{dst}")
    lns = g.new("Lns")
    e(f"s_cmp_eq_u32 s{sW}, 3"); e(f"s_cbranch_scc1 {lns}")
    stash_addr(vB_)
    for i in range(NSTASH):
        e(f"ds_write_b128 v{vB_}, {q(E_+4*i)} offset:{i*1024}")
    lab(lns)

    BR = W0
    AC = W0 + 16
    RR = S_
    SX_, SQ_ = S_ + 4, S_ + 5
    T0, T1, T2, T3 = S_ + 6, S_ + 7, S_ + 8, S_ + 9

    def allred_g(regs_tmp, op):
        for sw in ("v_permlane16_swap_b32", "v_permlane32_swap_b32"):
            for r, t in regs_tmp: e(f"v_mov_b32 v{t}, v{r}")
            e("s_nop 1" if len(regs_tmp) == 1 else "s_nop 0")
            for r, t in regs_tmp: e(f"{sw} v{r}, v{t}")
            for r, t in regs_tmp: e(f"{op} v{r}, v{r}, v{t}")

    def allred_bank(regs, op):
        for rot in (4, 8):
            e("s_nop 1" if len(regs) == 1 else "s_nop 0")
            for r in regs: e(f"{op}_dpp v{r}, v{r}, v{r} row_ror:{rot} row_mask:0xf bank_mask:0xf")

    def gemv_core(ksteps, ln, waits=True):
        nt = (ksteps + 3) // 4
        if ln:
            e(f"v_mov_b32 v{SX_}, 0"); e(f"v_mov_b32 v{SQ_}, 0")
        for t in range(nt):
            if waits: e(f"s_waitcnt vmcnt({nt-1-t})")
            for sp in range(4):
                s = 4 * t + sp
                if s < ksteps:
                    e(f"{MF} {q(AC+4*sp)}, {q(slabq(s))}, {q(BR+4*t)}, " + ("0" if t == 0 else q(AC + 4 * sp)))
                if ln:
                    e(f"v_dot2c_f32_bf16 v{SX_}, s{sONES}, v{BR+4*t+sp}")
                    e(f"v_dot2c_f32_bf16 v{SQ_}, v{BR+4*t+sp}, v{BR+4*t+sp}")
        if ln:
            e("s_nop 1")
            allred_bank([SX_, SQ_], "v_add_f32")
            allred_g([(SX_, T0), (SQ_, T1)], "v_add_f32")
            e(f"v_mul_f32 v{SX_}, 0x3b000000, v{SX_}")
            e(f"v_mul_f32 v{T0}, v{SX_}, v{SX_}")
            e(f"v_mov_b32 v{T1}, 0x3727c5ac")
            e(f"v_fmac_f32 v{T1}, 0x3b000000, v{SQ_}")
            e(f"v_sub_f32 v{T1}, v{T1}, v{T0}")
            e(f"v_max_f32 v{T1}, 0x3727c5ac, v{T1}")
            e(f"v_rsq_f32 v{SQ_}, v{T1}")
        else:
            e("s_nop 7")
        for i in range(4):
            e(f"v_add_f32_dpp v{RR+i}, v{AC+4+i}, v{AC+i} row_shl:4 row_mask:0xf bank_mask:0xf")
        for i in range(4):
            e(f"v_add_f32_dpp v{RR+i}, v{AC+8+i}, v{RR+i} row_shl:8 row_mask:0xf bank_mask:0xf")
        for i in range(4):
            e(f"v_add_f32_dpp v{RR+i}, v{AC+12+i}, v{RR+i} row_shl:12 row_mask:0xf bank_mask:0xf")
        if ln:
            for i in range(4):
                e(f"v_fma_f32 v{RR+i}, -v{SX_}, v{vCS+i}, v{RR+i}")
            for i in range(4):
                e(f"v_mul_f32 v{RR+i}, v{RR+i}, v{SQ_}")

    def nan_check(regs, nloaded, retry, restore_exec_full=True):
        sl = g.new("Lslow"); done = g.new("Lok")
        e(f"v_cmp_u_f32 vcc, v{regs[0]}, v{regs[1]}")
        e(f"v_cmp_u_f32 s[{sTP}:{sTP+1}], v{regs[2]}, v{regs[3]}")
        e(f"s_or_b64 vcc, vcc, s[{sTP}:{sTP+1}]")
        e(f"s_cbranch_scc1 {sl}")
        lab(done)
        def emit():
            lab(sl)
            e(f"s_mov_b64 s[{sTQ}:{sTQ+1}], exec")
            if restore_exec_full: e("s_mov_b64 exec, -1")
            rs = list(nloaded)
            e(f"v_mov_b32 v{vF_}, 0")
            for i in range(0, len(rs), 2):
                b2 = rs[i + 1] if i + 1 < len(rs) else rs[i]
                e(f"v_max3_u32 v{vF_}, v{vF_}, v{rs[i]}, v{b2}")
            e(f"v_cmp_eq_u32 vcc, -1, v{vF_}")
            e(f"s_mov_b64 exec, s[{sTQ}:{sTQ+1}]")
            e(f"s_cbranch_vccz {done}")
            g.spin_check(retry, done)
        slow.append(emit)

    c("wave0: q1 = LN(x0) @ wq slice, clear hand-off slots")
    lq1 = g.new("Lq1")
    e(f"s_cmp_lg_u32 s{sW}, 0"); e(f"s_cbranch_scc1 {lq1}")
    e("s_nop 7")
    gemv_core(16, True, waits=False)
    e(f"v_cvt_pk_bf16_f32 v{RR}, v{RR}, v{RR+1}")
    e(f"v_cvt_pk_bf16_f32 v{RR+1}, v{RR+2}, v{RR+3}")
    off_ng(vB_, 10, 3)
    e(f"s_lshl_b32 s{sT}, s{sR}, 5"); e(f"s_add_u32 s{sT}, s{sT}, s{sGB}"); e(f"s_add_u32 s{sT}, s{sT}, {Q1_O}")
    e(f"s_mov_b64 exec, s[{sM16}:{sM16+1}]")
    e(f"buffer_store_dwordx2 {q(RR,2)}, v{vB_}, s[{SWS}:{SWS+3}], s{sT} offen sc1")
    e("s_mov_b64 exec, -1")
    for i in range(4): e(f"v_mov_b32 v{AC+i}, -1")
    e(f"v_lshlrev_b32 v{vB_}, 4, v0")
    e(f"s_mul_i32 s{sT}, s{sR}, {CLR_PER_WG}"); e(f"s_add_u32 s{sT}, s{sT}, s{sGB}")
    for i in range(7):
        if i == 4: e(f"s_add_u32 s{sT}, s{sT}, 4096")
        e(f"buffer_store_dwordx4 {q(AC)}, v{vB_}, s[{SWS}:{SWS+3}], s{sT} offen offset:{(i%4)*1024} sc1")
    lab(lq1)
    g.vm.append("mark_q1")
    e("s_waitcnt lgkmcnt(0)")
    g.stamp(1, "slab done")

    Ve = [0, 1, 4, 5, 8, 9, 12, 13]
    Vo = [2, 3, 6, 7, 10, 11, 14, 15]
    def slot_of(T): return T >> 2

    def marker_wait(tag):
        idx = g.vm.index(tag)
        n = sum(1 for t in g.vm[idx + 1:] if not str(t).startswith("mark"))
        e(f"s_waitcnt vmcnt({min(n,63)})")

    def waitvm(*tags):
        best = None
        for tag in tags:
            idx = max(i for i, t in enumerate(g.vm) if t == tag)
            n = sum(1 for t in g.vm[idx + 1:] if not str(t).startswith("mark"))
            best = n if best is None else min(best, n)
        e(f"s_waitcnt vmcnt({min(best,63)})")

    kn = 4
    for i in range(8):
        vtile(Ve[i], slot_of(Ve[i]))
        ktile(kn); kn += 1
        if i == 1:
            c("wave0: stores landed -> arrive")
            la = g.new("Larr")
            e(f"s_cmp_lg_u32 s{sW}, 0"); e(f"s_cbranch_scc1 {la}")
            marker_wait("mark_q1")
            e(f"s_getreg_b32 s{sT}, hwreg(HW_REG_XCC_ID)")
            e(f"s_and_b32 s{sT}, s{sT}, 7"); e(f"s_lshl_b32 s{sT2}, s{sX}, 3"); e(f"s_add_u32 s{sT}, s{sT}, s{sT2}"); e(f"s_lshl_b32 s{sT}, s{sT}, 2")
            e(f"v_mov_b32 v{vB_}, s{sT}"); e(f"v_mov_b32 v{vC_}, 1")
            e("s_mov_b64 exec, 1")
            e(f"buffer_atomic_add v{vC_}, v{vB_}, s[{SDBG}:{SDBG+3}], 0 offen sc1")
            e("s_mov_b64 exec, -1")
            lab(la)
        if i == 6:
            e(f"v_lshlrev_b32 v{vD_}, 2, v0")
            g.vmop(f"buffer_load_dword v{vE_}, v{vD_}, s[{SDBG}:{SDBG+3}], 0 offen sc1", "cnt")

    def stage_slot(j):
        waitvm(f"V{4*j+1}")
        for dt in range(8):
            r = VR + 32 * j + 4 * dt
            a = vTRE if dt % 2 == 0 else vTRO
            for jh in range(2):
                e(f"ds_read_b64_tr_b16 v[{r+2*jh}:{r+2*jh+1}], v{a} offset:{j*8192 + jh*4096 + (dt>>1)*1024}")
            if dt == 3: e("s_waitcnt lgkmcnt(0)")
        e("s_waitcnt lgkmcnt(0)")

    stage_slot(0)
    vtile(Vo[0], 0); ktile(12); vtile(Vo[1], 0)
    c("grid barrier check")
    lck = g.new("Lck"); lckd = g.new("Lckd"); lcks = g.new("Lcks")
    waitvm("cnt")
    lab(lck)
    e(f"v_cmp_eq_u32 vcc, 32, v{vE_}")
    e(f"s_bcnt1_i32_b64 s{sT}, vcc")
    e(f"s_cmp_eq_u32 s{sT}, 8")
    e(f"s_cbranch_scc0 {lcks}")
    if not cfg["force_global"]:
        e(f"s_mov_b32 s{sLOC}, 1")
    lab(lckd)
    def emit_ck():
        lab(lcks)
        e(f"v_mov_b32 v{vB_}, v{vE_}")
        for rot in (1, 2, 4, 8):
            e("s_nop 1")
            e(f"v_add_u32_dpp v{vB_}, v{vB_}, v{vB_} row_ror:{rot} row_mask:0xf bank_mask:0xf")
        allred_g([(vB_, vC_)], "v_add_u32")
        e("s_nop 0")
        e(f"v_readfirstlane_b32 s{sT}, v{vB_}")
        e("s_nop 3")
        e(f"s_cmp_ge_u32 s{sT}, 256")
        e(f"s_cbranch_scc1 {lckd}")
        e(f"s_sub_u32 s{sSPIN}, s{sSPIN}, 1")
        e(f"s_cbranch_scc1 {lckd}")
        e("s_sleep 4")
        e(f"buffer_load_dword v{vE_}, v{vD_}, s[{SDBG}:{SDBG+3}], 0 offen sc1")
        e("s_waitcnt vmcnt(0)")
        e(f"s_branch {lck}")
    slow.append(emit_ck)
    QA, QB = W0, W0 + 16
    e(f"s_lshl_b32 s{sT}, s{sB}, 10"); e(f"s_add_u32 s{sT}, s{sT}, s{sGB}"); e(f"s_add_u32 s{sT}, s{sT}, {Q1_O}")
    for s in range(4):
        g.vmop(f"buffer_load_dwordx4 {q(QA+4*s)}, v{vQOFF}, s[{SWS}:{SWS+3}], s{sT} offen offset:{s*64} sc1", "q1")
    stage_slot(1)
    vtile(Vo[2], 1); ktile(13); vtile(Vo[3], 1)
    stage_slot(2)
    ktile(14)
    stage_slot(3)
    ktile(15)
    NT = cfg["NT"]
    for i in range(4, 8 - NT): vtile(Vo[i], slot_of(Vo[i]))
    waitvm("K15", "q1")
    g.stamp(2, "K landed")
    e("s_branch L_QK")

    lab("L_ATT2")
    e(f"s_lshl_b32 s{sT}, s{sB}, 10"); e(f"s_add_u32 s{sT}, s{sT}, s{sGB}"); e(f"s_add_u32 s{sT}, s{sT}, {QN_O - LS}")
    lab("L_QPOLL")
    for s in range(4):
        e(f"buffer_load_dwordx4 {q(QA+4*s)}, v{vQOFF}, s[{SWS}:{SWS+3}], s{sT} offen offset:{s*64} sc1")
    for s in range(4):
        e(f"s_waitcnt vmcnt({3-s})")
        r = QA + 4 * s
        if s == 0:
            e(f"v_max3_u32 v{vA}, v{r}, v{r+1}, v{r+2}"); e(f"v_max_u32 v{vA}, v{vA}, v{r+3}")
        else:
            e(f"v_max3_u32 v{vA}, v{vA}, v{r}, v{r+1}"); e(f"v_max3_u32 v{vA}, v{vA}, v{r+2}, v{r+3}")
    e(f"v_cmp_eq_u32 vcc, -1, v{vA}")
    e("s_cbranch_vccnz L_QRETRY")
    def emit_qr():
        lab("L_QRETRY")
        g.spin_check("L_QPOLL", "L_QK")
    slow.append(emit_qr)

    lab("L_QK")
    g.stamp(3, "qk start")
    for cc in range(4):
        cur = QA if cc % 2 == 0 else QB
        nxt = QB if cc % 2 == 0 else QA
        k = 0
        for u in range(4):
            T = 2 * (4 * (u >> 1) + cc) + (u & 1)
            for s in range(4):
                ar = (T * 4 + s) * 4
                e(f"{MF} {q(S_+4*u)}, a[{ar}:{ar+3}], {q(cur+4*s)}, " + ("0" if (cc == 0 and s == 0) else q(S_ + 4 * u)))
                if cc < 3 and k < 14:
                    idxs = [k] if k >= 2 else [k, 14 + k]
                    for i in idxs:
                        e(f"v_mov_b32_dpp v{nxt+i}, v{cur+i} row_shr:4 row_mask:0xf bank_mask:0xf bound_ctrl:0")
                k += 1
    vM, vMT, vST = vA, vB_, vC_
    e(f"v_lshlrev_b32 v{vST}, 2, v0")
    e(f"s_lshl_b32 s{sT}, s{sB}, 9"); e(f"s_add_u32 s{sT}, s{sT}, s{sGB}"); e(f"s_add_u32 s{sT2}, s{sT}, {ST_O}")
    e(f"s_lshl_b32 s{sT}, s{sC}, 2"); e(f"s_add_u32 s{sT}, s{sT}, s{sW}"); e(f"s_lshl_b32 s{sT}, s{sT}, 4"); e(f"s_add_u32 s{sT3}, s{sT2}, s{sT}")
    e(f"v_max3_f32 v{vM}, v{S_}, v{S_+1}, v{S_+2}")
    for i in range(3, 15, 2):
        e(f"v_max3_f32 v{vM}, v{vM}, v{S_+i}, v{S_+i+1}")
    e(f"v_max_f32 v{vM}, v{vM}, v{S_+15}")
    allred_bank([vM], "v_max_f32")
    allred_g([(vM, vMT)], "v_max_f32")
    e("s_mov_b64 exec, 0xf")
    g.lstore(f"buffer_store_dword v{vM}, v{vST}, s[{SWS}:{SWS+3}], s{sT3} offen")
    g.vm.append("st_store")
    e("s_mov_b64 exec, -1")
    vNM = vD_
    e(f"v_mul_f32 v{vNM}, s{sCSC}, v{vM}")
    PQ = [E_, E_ + 4, E_ + 8, E_ + 12]
    TQ = [E_ + 16, E_ + 20, E_ + 24, S_, S_ + 4]
    NQ = len(TQ)
    for i in range(8):
        e(f"v_fma_f32 v{S_+i}, v{S_+i}, s{sCSC}, -v{vNM}")
    for i in range(8):
        e(f"v_exp_f32 v{S_+i}, v{S_+i}")
    e("s_nop 0")
    for i in range(4):
        e(f"v_cvt_pk_bf16_f32 v{PQ[0]+i}, v{S_+2*i}, v{S_+2*i+1}")
    lp2 = g.new("Lp2")
    e(f"s_cmp_lg_u32 s{sLAYER}, 0"); e(f"s_cbranch_scc1 {lp2}")
    for i in range(8 - NT, 8): vtile(Vo[i], slot_of(Vo[i]))
    lab(lp2)
    g.stamp(4, "pv start")
    if cfg["stamps"]: e("s_waitcnt lgkmcnt(0)")

    ACC = W0
    vL, vLT = vE_, vF_
    vS0, vS1 = vKOFF, vVOFF
    seq = [("R", 0, dt) for dt in range(8)]
    for (lb, rb) in ((1, 2), (3, 4), (5, 6)):
        for dt in range(8):
            seq.append(("L", lb, dt)); seq.append(("R", rb, dt))
    seq += [("L", 7, dt) for dt in range(8)]
    Pof = {0: PQ[0], 1: PQ[1], 2: PQ[2], 3: PQ[3], 4: PQ[0], 5: PQ[1], 6: PQ[2], 7: PQ[3]}
    Ls = [s for s in seq if s[0] == "L"]
    def trread(k):
        _, blk, dt = Ls[k]
        r = TQ[k % NQ]; a = vTRE if dt % 2 == 0 else vTRO
        slot = blk >> 1
        return [f"ds_read_b64_tr_b16 v[{r+2*jh}:{r+2*jh+1}], v{a} offset:{slot*8192 + jh*4096 + (dt>>1)*1024}" for jh in range(2)]
    def shl(dst, src, n):
        return [f"v_mov_b32_dpp v{dst+i}, v{src+i} row_shl:{n} row_mask:0xf bank_mask:0xf bound_ctrl:0" for i in range(4)]
    fill = {i: [] for i in range(len(seq))}
    work = []
    work += [(0, x) for x in shl(PQ[1], PQ[0], 4)]
    work += [(0, x) for x in shl(PQ[2], PQ[0], 8)]
    work += [(0, f"v_mov_b32 v{vL}, 0")]
    work += [(0, x) for x in shl(PQ[3], PQ[0], 12)]
    work += [(0, f"v_dot2c_f32_bf16 v{vL}, s{sONES}, v{PQ[0]+i}") for i in range(4)]
    work += [(0, f"v_fma_f32 v{S_+i}, v{S_+i}, s{sCSC}, -v{vNM}") for i in range(8, 16)]
    work += [(0, f"v_exp_f32 v{S_+i}, v{S_+i}") for i in range(8, 16)]
    work += [(8, "s_nop 0")]
    work += [(8, f"v_cvt_pk_bf16_f32 v{PQ[0]+i}, v{S_+8+2*i}, v{S_+9+2*i}") for i in range(4)]
    work2 = []
    work2 += [(24, x) for x in shl(PQ[1], PQ[0], 4)]
    work2 += [(24, x) for x in shl(PQ[2], PQ[0], 8)]
    work2 += [(24, f"v_dot2c_f32_bf16 v{vL}, s{sONES}, v{PQ[0]+i}") for i in range(4)]
    work2 += [(40, x) for x in shl(PQ[3], PQ[0], 12)]
    Lpos = [i for i, s in enumerate(seq) if s[0] == "L"]
    pre = {i: [] for i in range(len(seq))}
    reads_at = {i: [] for i in range(len(seq))}
    for k in range(len(Ls)):
        pos = Lpos[k - NQ] if k >= NQ else min(k, 6)
        reads_at[pos].append(k)
    issued = []
    def spread(work, lo, hi, per):
        i = lo; n = 0
        for (earliest, ins) in work:
            while i < earliest or n >= per(i):
                i += 1; n = 0
                assert i < hi, (ins, i, hi)
            fill[i].append(ins); n += 1
    spread(work, 0, 24, lambda i: 3 if i < 8 else (3 if seq[i][0] == "R" else 1))
    spread(work2, 24, 56, lambda i: 2 if seq[i][0] == "R" else 0)
    ST_LOAD_POS = 17
    MRED_POS = 44
    blocks_waited = set()
    for i, (ty, blk, dt) in enumerate(seq):
        if ty == "L":
            k = Lpos.index(i)
            last = max(j for j, kk in enumerate(issued) if kk == k)
            n = len(issued) - 1 - last
            e(f"s_waitcnt lgkmcnt({n})")
            a = q(TQ[k % NQ])
        else:
            a = q(VR + 32 * (blk >> 1) + 4 * dt)
        e(f"{MF} {q(ACC+4*dt)}, {a}, {q(Pof[blk])}, " + ("0" if i < 8 else q(ACC + 4 * dt)))
        for k in reads_at[i]:
            b2 = Ls[k][1]
            if b2 not in blocks_waited:
                blocks_waited.add(b2)
                if b2 == 7:
                    e("s_waitcnt vmcnt(0)")
                else:
                    waitvm(f"V{2*b2+1}")
            for x in trread(k):
                e(x); issued.append(k)
        for x in fill[i]: e(x)
        if i == ST_LOAD_POS:
            g.vmop(f"buffer_load_dword v{vS0}, v{vST}, s[{SWS}:{SWS+3}], s{sT2} offen sc1", "stl")
            g.vmop(f"buffer_load_dword v{vS1}, v{vST}, s[{SWS}:{SWS+3}], s{sT2} offen offset:256 sc1", "stl")
    assert 7 in blocks_waited
    def mred():
        e(f"v_max_u32 v{vMT}, v{vS0}, v{vS1}")
        e(f"v_max_f32 v{vS0}, v{vS0}, v{vS1}")
        e(f"v_cmp_eq_u32 vcc, -1, v{vMT}")
    lab("L_MRED")
    mred()
    e("s_cbranch_vccnz L_STRETRY")
    lab("L_MRED_OK")
    def emit_str():
        lab("L_STRETRY")
        e(f"s_sub_u32 s{sSPIN}, s{sSPIN}, 1")
        e("s_cbranch_scc1 L_MRED_OK")
        e(f"buffer_load_dword v{vS0}, v{vST}, s[{SWS}:{SWS+3}], s{sT2} offen sc1")
        e(f"buffer_load_dword v{vS1}, v{vST}, s[{SWS}:{SWS+3}], s{sT2} offen offset:256 sc1")
        e("s_waitcnt vmcnt(0)")
        e("s_branch L_MRED")
    slow.append(emit_str)
    for rot in (4, 8):
        e(f"v_max_f32_dpp v{vS0}, v{vS0}, v{vS0} row_ror:{rot} row_mask:0xf bank_mask:0xf")
        e(f"v_add_f32_dpp v{vL}, v{vL}, v{vL} row_ror:{rot} row_mask:0xf bank_mask:0xf")
        e("s_nop 0")
    for sw in ("v_permlane16_swap_b32", "v_permlane32_swap_b32"):
        e(f"v_mov_b32 v{vS1}, v{vS0}"); e(f"v_mov_b32 v{vLT}, v{vL}")
        e("s_nop 0")
        e(f"{sw} v{vS0}, v{vS1}"); e(f"{sw} v{vL}, v{vLT}")
        e(f"v_max_f32 v{vS0}, v{vS0}, v{vS1}"); e(f"v_add_f32 v{vL}, v{vL}, v{vLT}")
    e(f"v_sub_f32 v{vS0}, v{vM}, v{vS0}")
    e(f"v_mul_f32 v{vS0}, s{sCSC}, v{vS0}")
    e(f"v_exp_f32 v{vMT}, v{vS0}")
    e(f"s_mul_i32 s{sT}, s{sW}, {OS_W}"); e(f"s_add_u32 s{sT}, s{sT}, {OS_B}")
    e(f"v_and_b32 v{vS0}, 3, v0")
    e(f"v_mul_f32 v{vST}, v{vMT}, v{vL}")
    e(f"v_mul_u32_u24 v{vS1}, {OS_H}, v{vS0}")
    e(f"v_lshrrev_b32 v{vLT}, 4, v0")
    e(f"v_lshl_add_u32 v{vS1}, v{vLT}, 4, v{vS1}")
    e(f"v_add_u32 v{vS1}, s{sT}, v{vS1}")
    e(f"s_lshl_b32 s{sT}, s{sW}, 3"); e(f"s_add_u32 s{sT}, s{sT}, {WSX_B}")
    e(f"v_lshlrev_b32 v{vS0}, 5, v{vS0}")
    e(f"v_add_u32 v{vS0}, s{sT}, v{vS0}")
    e(f"s_mov_b64 exec, s[{sM16}:{sM16+1}]")
    for dt in range(8):
        e(f"ds_write_b128 v{vS1}, {q(ACC+4*dt)} offset:{dt*64}")
    e(f"ds_write2_b32 v{vS0}, v{vMT}, v{vST} offset0:0 offset1:1")
    e("s_mov_b64 exec, -1")
    e(f"s_mul_i32 s{sT}, s{sW}, {OS_H}"); e(f"s_add_u32 s{sT}, s{sT}, {OS_B}")
    e(f"v_lshlrev_b32 v{vA}, 3, v0")
    e(f"v_add_u32 v{vB_}, s{sT}, v{vA}")
    e(f"s_lshl_b32 s{sT}, s{sW}, 5"); e(f"s_add_u32 s{sT}, s{sT}, {WSX_B}")
    e(f"v_mov_b32 v{vC_}, s{sT}")
    e(f"s_lshl_b32 s{sT}, s{sB}, 14"); e(f"s_add_u32 s{sT2}, s{sT}, s{sGB}")
    e(f"s_lshl_b32 s{sT}, s{sC}, 11"); e(f"s_add_u32 s{sT3}, s{sT2}, s{sT}")
    e(f"s_lshl_b32 s{sT}, s{sW}, 9"); e(f"s_add_u32 s{sT3}, s{sT3}, s{sT}")
    e(f"s_lshl_b32 s{sT}, s{sB}, 2"); e(f"s_add_u32 s{sT}, s{sT}, s{sW}"); e(f"s_lshl_b32 s{sT}, s{sT}, 5")
    e(f"s_add_u32 s{sSO}, s{sT}, s{sGB}"); e(f"s_lshl_b32 s{sT}, s{sC}, 2"); e(f"s_add_u32 s{sSO}, s{sSO}, s{sT}"); e(f"s_add_u32 s{sSO}, s{sSO}, {LA_O}")
    e("s_waitcnt lgkmcnt(0)")
    e("s_barrier")
    for w in range(4):
        e(f"ds_read_b64 {q(W0+2*w,2)}, v{vB_} offset:{w*OS_W}")
    e(f"ds_read_b128 {q(W0+8)}, v{vC_}")
    e(f"ds_read_b128 {q(W0+12)}, v{vC_} offset:16")
    e("s_waitcnt lgkmcnt(0)")
    e(f"v_mul_f32 v{W0+16}, v{W0+8}, v{W0}"); e(f"v_mul_f32 v{W0+17}, v{W0+8}, v{W0+1}")
    for w in range(1, 4):
        e(f"v_fmac_f32 v{W0+16}, v{W0+8+2*w}, v{W0+2*w}"); e(f"v_fmac_f32 v{W0+17}, v{W0+8+2*w}, v{W0+2*w+1}")
    g.lstore(f"buffer_store_dwordx2 {q(W0+16,2)}, v{vA}, s[{SWS}:{SWS+3}], s{sT3} offen")
    e(f"v_add_f32 v{W0+18}, v{W0+9}, v{W0+11}"); e(f"v_add_f32 v{W0+19}, v{W0+13}, v{W0+15}")
    e(f"v_add_f32 v{W0+18}, v{W0+18}, v{W0+19}")
    e("s_mov_b64 exec, 1")
    g.lstore(f"buffer_store_dword v{W0+18}, off, s[{SWS}:{SWS+3}], s{sSO}")
    e("s_mov_b64 exec, -1")
    g.stamp(5, "PA published")

    e(f"s_cmp_eq_u32 s{sW}, 3"); e("s_cbranch_scc1 L_W3")
    def restore_stash():
        stash_addr(vB_)
        for i in range(NSTASH):
            e(f"ds_read_b128 {q(E_+4*i)}, v{vB_} offset:{i*1024}")
    e(f"s_cmp_eq_u32 s{sW}, 1"); e("s_cbranch_scc1 L_W1")
    e(f"s_cmp_eq_u32 s{sW}, 2"); e("s_cbranch_scc1 L_W2")

    def sum8(extra_waits_after):
        for k in range(1, 8):
            e(f"s_waitcnt vmcnt({7 - k + extra_waits_after})")
            src = W0 if k == 1 else RR
            e(f"v_pk_add_f32 {q(RR,2)}, {q(src,2)}, {q(W0+4*k,2)}")
            e(f"v_pk_add_f32 {q(RR+2,2)}, {q(src+2,2)}, {q(W0+4*k+2,2)}")

    def next_layer_and_jump():
        e(f"s_mov_b32 s{sLAYER}, 1")
        e(f"s_add_u32 s{sGB}, s{sGB}, {LS}")
        e(f"s_mov_b32 s{sLB}, {LS}")
        e("s_branch L_ATT2")

    def bload(voff, soff, n=4, voff2=None):
        for t in range(n):
            vo = voff if (t == 0 or voff2 is None) else voff2
            e(f"buffer_load_dwordx4 {q(BR+4*t)}, v{vo}, s[{SWS}:{SWS+3}], s{soff} offen offset:{t*256} sc1")

    e(f"s_cmp_lg_u32 s{sLAYER}, 0"); e("s_cbranch_scc1 L_FIN")
    restore_stash()
    off_bload(vA, 10)
    off_ng(vB_, 10, 3)
    e(f"s_add_u32 s{sT2}, s{sGB}, {X2_O}")
    e(f"s_lshl_b32 s{sT}, s{sR}, 5"); e(f"s_add_u32 s{sT3}, s{sT}, s{sGB}"); e(f"s_add_u32 s{sT3}, s{sT3}, {QN_O}")
    e("s_waitcnt lgkmcnt(0)")
    e("s_barrier"); e("s_barrier"); e("s_barrier")
    lab("L_S4")
    e("s_mov_b64 exec, -1")
    bload(vA, sT2)
    gemv_core(16, True)
    e(f"s_mov_b64 exec, s[{sM16}:{sM16+1}]")
    nan_check([RR, RR + 1, RR + 2, RR + 3], range(BR, BR + 16), "L_S4")
    e(f"v_cvt_pk_bf16_f32 v{RR}, v{RR}, v{RR+1}")
    e(f"v_cvt_pk_bf16_f32 v{RR+1}, v{RR+2}, v{RR+3}")
    g.lstore(f"buffer_store_dwordx2 {q(RR,2)}, v{vB_}, s[{SWS}:{SWS+3}], s{sT3} offen")
    e("s_mov_b64 exec, -1")
    g.stamp(6, "w0:S4 done")
    e("s_barrier")
    next_layer_and_jump()

    RES = S_ + 12
    def reduce_global(name, po, delay):
        e(f"s_lshl_b32 s{sT}, s{sR}, 8"); e(f"s_add_u32 s{sT}, s{sT}, s{sLB}"); e(f"s_add_u32 s{sSO}, s{sT}, {po}")
        for k in range(1, 8):
            e(f"s_add_u32 s{sSO+k}, s{sSO+k-1}, {GS}")
        if delay: e(f"s_sleep {delay}")
        lab(name)
        for k in range(8):
            e(f"buffer_load_dwordx4 {q(W0+4*k)}, v{vC_}, s[{SWS}:{SWS+3}], s{sSO+k} offen sc1")
        sum8(0)
        nan_check([RR, RR + 1, RR + 2, RR + 3], range(W0, W0 + 32), name, restore_exec_full=False)
        e(f"v_lshlrev_b32 v{T0}, 16, v{RES}"); e(f"v_and_b32 v{T1}, 0xffff0000, v{RES}")
        e(f"v_lshlrev_b32 v{T2}, 16, v{RES+1}"); e(f"v_and_b32 v{T3}, 0xffff0000, v{RES+1}")
        e(f"v_pk_add_f32 {q(RR,2)}, {q(RR,2)}, {q(T0,2)}")
        e(f"v_pk_add_f32 {q(RR+2,2)}, {q(RR+2,2)}, {q(T2,2)}")
        e(f"v_cvt_pk_bf16_f32 v{RR}, v{RR}, v{RR+1}")
        e(f"v_cvt_pk_bf16_f32 v{RR+1}, v{RR+2}, v{RR+3}")

    lab("L_W1")
    off_ng(vC_, 6, 4)
    e(f"s_lshl_b32 s{sT}, s{sC}, 8"); e(f"s_add_u32 s{sSO}, s{sT2}, s{sT}")
    for k in range(1, 4): e(f"s_add_u32 s{sSO+k}, s{sSO+k-1}, 4096")
    e(f"s_lshr_b32 s{sT}, s{sC}, 1"); e(f"s_lshl_b32 s{sT3}, s{sB}, 2"); e(f"s_add_u32 s{sT}, s{sT}, s{sT3}"); e(f"s_lshl_b32 s{sT}, s{sT}, 5")
    e(f"s_add_u32 s{sT}, s{sT}, s{sGB}"); e(f"s_add_u32 s{sSO+4}, s{sT}, {LA_O}")
    e(f"s_mov_b64 exec, s[{sM16}:{sM16+1}]")
    lab("L_A1")
    LAR = S_ + 4
    e(f"buffer_load_dwordx4 {q(LAR)}, off, s[{SWS}:{SWS+3}], s{sSO+4} sc1")
    e(f"buffer_load_dwordx4 {q(LAR+4)}, off, s[{SWS}:{SWS+3}], s{sSO+4} offset:16 sc1")
    for k in range(8):
        e(f"buffer_load_dwordx4 {q(W0+4*k)}, v{vC_}, s[{SWS}:{SWS+3}], s{sSO+(k>>1)} offen offset:{(k&1)*2048} sc1")
    e("s_waitcnt vmcnt(8)")
    LT = S_ + 12
    e(f"v_pk_add_f32 {q(LT,2)}, {q(LAR,2)}, {q(LAR+2,2)}")
    e(f"v_pk_add_f32 {q(LT+2,2)}, {q(LAR+4,2)}, {q(LAR+6,2)}")
    e(f"v_pk_add_f32 {q(LT,2)}, {q(LT,2)}, {q(LT+2,2)}")
    e(f"v_add_f32 v{LT}, v{LT}, v{LT+1}")
    e(f"v_rcp_f32 v{LT}, v{LT}")
    sum8(0)
    for i in range(4): e(f"v_mul_f32 v{RR+i}, v{RR+i}, v{LT}")
    nan_check([RR, RR + 1, RR + 2, RR + 3], list(range(W0, W0 + 32)) + list(range(LAR, LAR + 8)), "L_A1", restore_exec_full=False)
    e(f"v_cvt_pk_bf16_f32 v{RR}, v{RR}, v{RR+1}")
    e(f"v_cvt_pk_bf16_f32 v{RR+1}, v{RR+2}, v{RR+3}")
    e(f"v_lshrrev_b32 v{vD_}, 1, v{vC_}")
    e(f"s_lshl_b32 s{sT}, s{sB}, 10"); e(f"s_lshl_b32 s{sT3}, s{sC}, 7"); e(f"s_add_u32 s{sT}, s{sT}, s{sT3}")
    e(f"s_add_u32 s{sT}, s{sT}, s{sGB}"); e(f"s_add_u32 s{sT}, s{sT}, {O_O}")
    g.lstore(f"buffer_store_dwordx2 {q(RR,2)}, v{vD_}, s[{SWS}:{SWS+3}], s{sT} offen")
    e("s_mov_b64 exec, -1")
    g.stamp(6, "w1:A1 done")
    restore_stash()
    off_bload(vA, 10)
    off_ng(vB_, 10, 3)
    lr1 = g.new("Lres"); lr2 = g.new("Lres")
    e(f"s_lshl_b32 s{sT}, s{sR}, 5")
    e(f"s_cmp_lg_u32 s{sLAYER}, 0"); e(f"s_cbranch_scc1 {lr1}")
    e(f"buffer_load_dwordx2 {q(RES,2)}, v{vB_}, s[{SX0}:{SX0+3}], s{sT} offen")
    e(f"s_branch {lr2}")
    lab(lr1)
    e(f"s_add_u32 s{sT3}, s{sT}, s{sGB}"); e(f"s_add_u32 s{sT3}, s{sT3}, {X2_O - LS}")
    e(f"buffer_load_dwordx2 {q(RES,2)}, v{vB_}, s[{SWS}:{SWS+3}], s{sT3} offen sc1")
    lab(lr2)
    e(f"s_add_u32 s{sT2}, s{sGB}, {O_O}")
    e(f"s_lshl_b32 s{sT}, s{sR}, 8"); e(f"s_add_u32 s{sT3}, s{sT}, s{sGB}"); e(f"s_add_u32 s{sT3}, s{sT3}, {PB_O}")
    e("s_waitcnt lgkmcnt(0)")
    lab("L_S1")
    e("s_mov_b64 exec, -1")
    bload(vA, sT2)
    gemv_core(16, False)
    e(f"s_mov_b64 exec, s[{sM16}:{sM16+1}]")
    nan_check([RR, RR + 1, RR + 2, RR + 3], range(BR, BR + 16), "L_S1")
    e(f"buffer_store_dwordx4 {q(RR)}, v{vC_}, s[{SWS}:{SWS+3}], s{sT3} offen sc1")
    g.stamp(7, "w1:S1 done")
    reduce_global("L_B1", PB_O, cfg["delayB"])
    e(f"s_lshl_b32 s{sT}, s{sR}, 5"); e(f"s_add_u32 s{sT}, s{sT}, s{sGB}"); e(f"s_add_u32 s{sT}, s{sT}, {X1_O}")
    g.lstore(f"buffer_store_dwordx2 {q(RR,2)}, v{vB_}, s[{SWS}:{SWS+3}], s{sT} offen")
    e("s_mov_b64 exec, -1")
    g.stamp(8, "w1:B1 done")
    e("s_barrier")
    e(f"s_cmp_lg_u32 s{sLAYER}, 0"); e("s_cbranch_scc1 L_FIN")
    e("s_barrier"); e("s_barrier"); e("s_barrier")
    next_layer_and_jump()

    lab("L_W2")
    restore_stash()
    off_bload(vA, 10)
    off_ng(vB_, 9, 3)
    e(f"s_add_u32 s{sT2}, s{sGB}, {X1_O}")
    e(f"s_lshl_b32 s{sT}, s{sR}, 4"); e(f"s_add_u32 s{sT3}, s{sT}, s{sGB}"); e(f"s_add_u32 s{sT3}, s{sT3}, {H_O}")
    e("s_waitcnt lgkmcnt(0)")
    e("s_barrier")
    e(f"s_cmp_ge_u32 s{sR}, 28"); e("s_cbranch_scc1 L_S2D")
    lab("L_S2")
    e("s_mov_b64 exec, -1")
    bload(vA, sT2)
    gemv_core(16, True)
    c("gate in rows g<2, up in g>=2 : bring up values down")
    for i in range(4): e(f"v_mov_b32 v{T0+i}, v{RR+i}")
    e("s_nop 0")
    for i in range(4): e(f"v_permlane32_swap_b32 v{RR+i}, v{T0+i}")
    for i in range(4): e(f"v_max_f32 v{AC+i}, 0, v{RR+i}")
    e(f"s_mov_b64 exec, s[{sM8}:{sM8+1}]")
    for i in range(4): e(f"v_mul_f32 v{AC+i}, v{AC+i}, v{T0+i}")
    for i in range(4): e(f"v_add_f32 v{RR+i}, v{RR+i}, v{T0+i}")
    nan_check([RR, RR + 1, RR + 2, RR + 3], range(BR, BR + 16), "L_S2")
    e(f"v_cvt_pk_bf16_f32 v{RR}, v{AC}, v{AC+1}")
    e(f"v_cvt_pk_bf16_f32 v{RR+1}, v{AC+2}, v{AC+3}")
    g.lstore(f"buffer_store_dwordx2 {q(RR,2)}, v{vB_}, s[{SWS}:{SWS+3}], s{sT3} offen")
    e("s_mov_b64 exec, -1")
    lab("L_S2D")
    g.stamp(6, "w2:S2 done")
    e("s_barrier")
    e(f"s_cmp_lg_u32 s{sLAYER}, 0"); e("s_cbranch_scc1 L_FIN")
    e("s_barrier"); e("s_barrier")
    next_layer_and_jump()

    lab("L_W3")
    off_bload(vA, 9)
    e(f"v_bfe_u32 v{vD_}, v0, 2, 2")
    e(f"v_cmp_eq_u32 vcc, 3, v{vD_}")
    e(f"v_subrev_u32 v{vD_}, 64, v{vA}")
    e("s_nop 0")
    e(f"v_cndmask_b32 v{vD_}, v{vA}, v{vD_}, vcc")
    off_ng(vB_, 10, 3)
    off_ng(vC_, 6, 4)
    e(f"s_add_u32 s{sT2}, s{sGB}, {H_O}")
    e(f"s_lshl_b32 s{sT}, s{sR}, 8"); e(f"s_add_u32 s{sT3}, s{sT}, s{sGB}"); e(f"s_add_u32 s{sT3}, s{sT3}, {PD_O}")
    e("s_barrier")
    c("residual x1 slice (own workgroup wrote it before the barrier)")
    e(f"s_lshl_b32 s{sT}, s{sR}, 5"); e(f"s_add_u32 s{sT}, s{sT}, s{sGB}"); e(f"s_add_u32 s{sSO}, s{sT}, {X1_O}")
    e("s_barrier")
    lab("L_S3")
    e("s_mov_b64 exec, -1")
    e(f"buffer_load_dwordx2 {q(RES,2)}, v{vB_}, s[{SWS}:{SWS+3}], s{sSO} offen sc1")
    bload(vA, sT2, 2, vD_)
    gemv_core(7, False)
    e(f"s_mov_b64 exec, s[{sM16}:{sM16+1}]")
    c("fold the residual sentinel into the check")
    e(f"v_max_u32 v{T0}, v{RES}, v{RES+1}")
    e(f"v_cmp_eq_u32 vcc, -1, v{T0}")
    e("s_cbranch_vccnz L_S3RETRY")
    def emit_s3r():
        lab("L_S3RETRY")
        g.spin_check("L_S3", "L_S3GO")
    slow.append(emit_s3r)
    lab("L_S3GO")
    nan_check([RR, RR + 1, RR + 2, RR + 3], range(BR, BR + 8), "L_S3")
    e(f"buffer_store_dwordx4 {q(RR)}, v{vC_}, s[{SWS}:{SWS+3}], s{sT3} offen sc1")
    g.stamp(6, "w3:S3 done")
    ld1 = g.new("Ld1")
    e(f"s_cmp_eq_u32 s{sLAYER}, 0"); e(f"s_cbranch_scc1 {ld1}")
    e(f"s_cmp_lg_u32 s{sX}, 0"); e("s_cbranch_scc1 L_FIN")
    lab(ld1)
    reduce_global("L_D1", PD_O, cfg["delayD"])
    e(f"s_lshl_b32 s{sT}, s{sR}, 5")
    e(f"s_cmp_lg_u32 s{sLAYER}, 0"); e("s_cbranch_scc1 L_OUT")
    e(f"s_add_u32 s{sT}, s{sT}, s{sGB}"); e(f"s_add_u32 s{sT}, s{sT}, {X2_O}")
    g.lstore(f"buffer_store_dwordx2 {q(RR,2)}, v{vB_}, s[{SWS}:{SWS+3}], s{sT} offen")
    e("s_mov_b64 exec, -1")
    g.stamp(7, "w3:D1 done")
    e("s_barrier"); e("s_barrier")
    next_layer_and_jump()
    lab("L_OUT")
    e(f"buffer_store_dwordx2 {q(RR,2)}, v{vB_}, s[{SOUT}:{SOUT+3}], s{sT} offen")
    lab("L_FIN")
    if cfg["stamps"]:
        e("s_mov_b64 exec, -1")
        e("s_waitcnt vmcnt(0)")
        g.stamp(15, "end")
        e("s_waitcnt lgkmcnt(0)")
        e(f"s_lshl_b32 s{sT}, s2, 2"); e(f"s_add_u32 s{sT}, s{sT}, s{sW}"); e(f"s_lshl_b32 s{sT}, s{sT}, 6")
        e(f"s_add_u32 s{sT}, s{sT}, {STAMP_OFF}")
        e(f"s_mov_b32 s{SWS+2}, 0x10000000")
        for i, r in enumerate(STAMP_S):
            e(f"v_mov_b32 v{W0+i}, s{r}")
        e("s_mov_b64 exec, 1")
        for i in range(4):
            e(f"buffer_store_dwordx4 {q(W0+4*i)}, off, s[{SWS}:{SWS+3}], s{sT} offset:{16*i}")
        e("s_waitcnt vmcnt(0)")
    lab("L_END")
    e("s_endpgm")
    for f in slow: f()

    tail = []
    tail.append('.section .rodata,"a"'); tail.append(".p2align 6"); tail.append(f".amdhsa_kernel {KNAME}")
    tail += ["  .amdhsa_next_free_vgpr 512", "  .amdhsa_next_free_sgpr 102", "  .amdhsa_accum_offset 256",
             "  .amdhsa_group_segment_fixed_size 0", "  .amdhsa_kernarg_size 96", "  .amdhsa_user_sgpr_count 2",
             "  .amdhsa_user_sgpr_kernarg_segment_ptr 1", "  .amdhsa_system_sgpr_workgroup_id_x 1", ".end_amdhsa_kernel"]
    return "\n".join(hdr + g.L + tail) + "\n", g.stamp_names


if __name__ == "__main__":
    out = sys.argv[1] if len(sys.argv) > 1 else "k.s"
    kw = {}
    for a in sys.argv[2:]:
        k, v = a.split("=", 1)
        try: v = eval(v)
        except Exception: pass
        kw[k] = v
    s, names = gen(**kw)
    open(out, "w").write(s)
    import json
    json.dump(names, open(out + ".stamps", "w"))
```
